```python
import torch

def _softmax(x, axis=-1):
    return torch.softmax(x, dim=axis)
def _gelu(x):
    return torch.nn.functional.gelu(x, approximate="tanh")
def _silu(x):
    return torch.nn.functional.silu(x)
def _sigmoid(x):
    return torch.sigmoid(x)
def _layernorm(x, axis=-1, eps=1e-5):
    m = x.mean(dim=axis, keepdim=True)
    v = x.var(dim=axis, keepdim=True, unbiased=False)
    return (x - m) / torch.sqrt(v + eps)
def _scatter_add(tgt, idx, src, axis=0):
    return tgt.clone().index_add_(axis, idx, src)
def _segment_sum(src, seg, n):
    out = torch.zeros((n,) + src.shape[1:], dtype=src.dtype)
    return out.index_add_(0, seg, src)
def _pad(x, pw):
    flat = tuple(v for pair in reversed(pw) for v in pair)
    return torch.nn.functional.pad(x, flat)

kernel_name = 'concat_heads__mha_block__sliding_local_dilated__prompt'

def setup_inputs():

    _w = (lambda a: (lambda t: t.to(torch.bfloat16) if t.is_floating_point() else t)(torch.as_tensor(a)))
    def _A_setup():
        B, S, D, H = 1, 2048, 512, 32
        return {
            "x": _w((lambda *s: torch.randn(*s, dtype=torch.bfloat16) * 0.2)(B, S, D)),
            "wqkv": _w((lambda *s: torch.randn(*s, dtype=torch.bfloat16) * 0.4)(D, 3 * D)),
            "wo": _w((lambda *s: torch.randn(*s, dtype=torch.bfloat16) * 0.1)(D, D)),
        }
    _A_in = _A_setup()

    def _B_setup():
        B, S, D = 1, 2048, 512
        return {
            "x": _w((lambda *s: torch.randn(*s, dtype=torch.bfloat16) * 0.4)(B, S, D)),
            "wqkv": _w((lambda *s: torch.randn(*s, dtype=torch.bfloat16) * 0.4)(D, 3 * D)),
            "wo": _w((lambda *s: torch.randn(*s, dtype=torch.bfloat16) * 0.05)(D, D)),
        }
    _B_in = _B_setup()

    return {
        "A_x": _A_in["x"],
        "A_wqkv": _A_in["wqkv"],
        "A_wo": _A_in["wo"],
        "B_x": _B_in["x"],
        "B_wqkv": _B_in["wqkv"],
        "B_wo": _B_in["wo"],
    }

def reference(A_x, A_wqkv, A_wo, B_x, B_wqkv, B_wo):
    def _A_ref(x, wqkv, wo):
        B, S, D = x.shape
        H = 32
        Dh = D // H
        qkv = (lambda x, *d: x.permute(*d))((x @ wqkv).reshape(B, S, 3, H, Dh), 2, 0, 3, 1, 4)
        q, k, v = qkv[0], qkv[1], qkv[2]
        scores = torch.einsum("bhqd,bhkd->bhqk", q, k) * (Dh ** -0.5)
        p = _softmax(scores, axis=-1)
        o = torch.einsum("bhqk,bhkd->bhqd", p, v)
        return (lambda x, *d: x.permute(*d))(o, 0, 2, 1, 3).reshape(B, S, D) @ wo

    def _B_ref(x, wqkv, wo):
        B, S, D = x.shape
        H = 32; Dh = D // H
        W, dil = 8, 2
        qkv = (lambda x, *d: x.permute(*d))((x @ wqkv).reshape(B, S, 3, H, Dh), 2, 0, 3, 1, 4)
        q, k, v = qkv[0], qkv[1], qkv[2]
        scale = Dh ** -0.5
        pos = torch.arange(S)
        off = torch.arange(W) * dil
        idx = pos[:, None] - off[None, :]
        mask = idx >= 0
        idx_c = torch.where(mask, idx, 0).reshape(-1)
        kg = k[:, :, idx_c, :].reshape(B, H, S, W, Dh)
        vg = v[:, :, idx_c, :].reshape(B, H, S, W, Dh)
        logits = torch.einsum("bhsd,bhswd->bhsw", q, kg) * scale
        logits = torch.where(mask[None, None, :, :], logits, -1e9)
        attn = _softmax(logits, axis=-1)
        o = torch.einsum("bhsw,bhswd->bhsd", attn, vg)
        return (lambda x, *d: x.permute(*d))(o, 0, 2, 1, 3).reshape(B, S, D) @ wo

    a = _A_ref(A_x, A_wqkv, A_wo)
    b = _B_ref(B_x, B_wqkv, B_wo)
    return torch.concatenate([a, b], axis=-1)
```

```python
class Asm:
    def __init__(self):
        self.L=[]
        self.lds=[]
        self.vm=[]
    def e(self,s):
        for ln in s.split("\n"):
            self.L.append("    "+ln.strip())
    def lab(self,s): self.L.append(s+":")
    def c(self,s): self.L.append("    ; "+s)
    def raw(self,s): self.L.append(s)
    def ds(self,s,tag):
        self.e(s); self.lds.append(tag)
    def need_lds(self,*tags):
        idx=-1
        for i,t in enumerate(self.lds):
            if t in tags: idx=i
        if idx<0: return
        n=len(self.lds)-1-idx
        self.e(f"s_waitcnt lgkmcnt({min(n,15)})")
        if n<=15: self.lds=self.lds[idx+1:]
        else: self.lds=self.lds[len(self.lds)-15:]
    def lds_drain(self):
        if self.lds:
            self.e("s_waitcnt lgkmcnt(0)")
        self.lds=[]
    def vmi(self,s,tag):
        self.e(s); self.vm.append(tag)
    def need_vm(self,*tags):
        idx=-1
        for i,t in enumerate(self.vm):
            if t in tags: idx=i
        if idx<0: return
        n=len(self.vm)-1-idx
        self.e(f"s_waitcnt vmcnt({min(n,63)})")
        if n<=63: self.vm=self.vm[idx+1:]
        else: self.vm=self.vm[len(self.vm)-63:]
    def text(self): return "\n".join(self.L)+"\n"

def vr(a,n=1):
    return f"v{a}" if n==1 else f"v[{a}:{a+n-1}]"
def sr(a,n=1):
    return f"s{a}" if n==1 else f"s[{a}:{a+n-1}]"

def kd(name,vgpr,sgpr=96,accum=None):
    accum=accum or ((vgpr+3)//4*4)
    return f""".section .rodata,"a"
.p2align 6
.amdhsa_kernel {name}
  .amdhsa_next_free_vgpr {vgpr}
  .amdhsa_next_free_sgpr {sgpr}
  .amdhsa_accum_offset {accum}
  .amdhsa_group_segment_fixed_size 0
  .amdhsa_kernarg_size 72
  .amdhsa_user_sgpr_count 2
  .amdhsa_user_sgpr_kernarg_segment_ptr 1
  .amdhsa_system_sgpr_workgroup_id_x 1
.end_amdhsa_kernel
.text
"""
WS_Q=0x000000
WS_KV=0x400000
WS_O=0xC00000
WS_SIZE=0x1000000
CSCALE=0x3EB8AA3B
```

```python
from common import *
def gen_k1(name):
    a=Asm()
    a.raw(f".globl {name}\n.p2align 8\n.type {name},@function\n{name}:")
    a.e("s_cmp_ge_u32 s2, 256")
    a.e(f"s_cbranch_scc1 {name}_end")
    a.e("s_load_dwordx4 s[4:7], s[0:1], 0")
    a.e("s_load_dwordx2 s[8:9], s[0:1], 24")
    a.e("s_load_dwordx2 s[10:11], s[0:1], 32")
    a.e("s_load_dwordx2 s[12:13], s[0:1], 64")
    a.e("v_lshrrev_b32 v4, 6, v0")
    a.e("v_and_b32 v1, 63, v0")
    a.e("s_and_b32 s18, s2, 7")
    a.e("v_readfirstlane_b32 s14, v4")
    a.e("s_lshr_b32 s19, s2, 3")
    a.e("s_lshr_b32 s15, s18, 2")
    a.e("s_bfe_u32 s16, s18, 0x10001")
    a.e("s_lshl_b32 s16, s16, 3")
    a.e("s_and_b32 s17, s19, 7")
    a.e("s_add_u32 s16, s16, s17")
    a.e("s_and_b32 s17, s18, 1")
    a.e("s_lshl_b32 s17, s17, 2")
    a.e("s_lshr_b32 s19, s19, 3")
    a.e("s_add_u32 s17, s17, s19")
    a.e("s_waitcnt lgkmcnt(0)")
    a.e("s_cmp_eq_u32 s15, 0")
    a.e("s_cselect_b32 s20, s4, s8")
    a.e("s_cselect_b32 s21, s5, s9")
    a.e("s_mov_b32 s22, 0x200000")
    a.e("s_mov_b32 s23, 0x20000")
    a.e("s_cselect_b32 s24, s6, s10")
    a.e("s_cselect_b32 s25, s7, s11")
    a.e("s_mov_b32 s26, 0x180000")
    a.e("s_mov_b32 s27, 0x20000")
    a.e("s_mov_b32 s28, s12")
    a.e("s_mov_b32 s29, s13")
    a.e(f"s_mov_b32 s30, 0x{WS_SIZE:x}")
    a.e("s_mov_b32 s31, 0x20000")
    a.e("s_cmp_lt_u32 s14, 4")
    a.e(f"s_cbranch_scc1 {name}_compute")
    a.e("s_sub_u32 s14, s14, 4")
    a.e("v_lshrrev_b32 v3, 3, v1")
    a.e("v_and_b32 v4, 7, v1")
    a.e("v_lshrrev_b32 v5, 4, v1")
    a.e("v_xor_b32 v6, v4, v5")
    a.e("v_xor_b32 v7, 4, v6")
    a.e("v_lshlrev_b32 v8, 10, v3")
    a.e("v_lshl_add_u32 v10, v6, 4, v8")
    a.e("v_lshl_add_u32 v11, v7, 4, v8")
    a.e("v_and_b32 v5, 1, v5")
    a.e("v_lshlrev_b32 v5, 2, v5")
    a.e("v_xor_b32 v6, v4, v5")
    a.e("v_mul_u32_u24 v8, 3072, v3")
    a.e("v_lshl_add_u32 v12, v6, 4, v8")
    a.e("s_lshl_b32 s32, s16, 17")
    a.e("s_lshl_b32 s34, s14, 15")
    a.e("s_add_u32 s32, s32, s34")
    a.e("s_lshl_b32 s33, s14, 12")
    a.e("s_lshl_b32 s35, s17, 7")
    a.e("s_mul_i32 s34, s14, 49152")
    a.e("s_add_u32 s35, s35, s34")
    a.e("s_lshl_b32 s36, s14, 11")
    a.e("s_add_u32 s36, s36, 16384")
    def chunk(c):
        st=(c%4)*40960
        for t in range(4):
            a.e(f"s_add_u32 m0, s33, {st+t*1024}")
            a.e(f"s_add_u32 s34, s32, {t*8192+c*128}")
            a.e(f"buffer_load_dwordx4 v{10+(t&1)}, s[20:23], s34 offen lds")
        for seg in range(3):
            for u in range(2):
                a.e(f"s_add_u32 m0, s36, {st+seg*8192+u*1024}")
                a.e(f"s_add_u32 s34, s35, {c*196608+u*24576+seg*1024}")
                a.e(f"buffer_load_dwordx4 v12, s[24:27], s34 offen lds")
    for c in range(4): chunk(c)
    issued=4
    for c in range(8):
        a.e(f"s_waitcnt vmcnt({(issued-c-1)*10})")
        a.e("s_barrier")
        if c>=1 and c+3<8:
            chunk(c+3); issued+=1
    a.e("s_endpgm")
    a.lab(f"{name}_compute")
    a.e("v_and_b32 v2, 31, v1")
    a.e("v_lshrrev_b32 v3, 5, v1")
    a.e("s_and_b32 s37, s14, 1")
    a.e("s_lshr_b32 s38, s14, 1")
    a.e("v_bfe_u32 v4, v2, 1, 3")
    a.e("v_xor_b32 v4, v3, v4")
    a.e("v_lshlrev_b32 v5, 7, v2")
    a.e("s_lshl_b32 s34, s37, 13")
    a.e("v_add_u32 v5, s34, v5")
    for sp in range(4):
        a.e(f"v_xor_b32 v6, {2*sp}, v4")
        a.e(f"v_lshl_add_u32 v{16+sp}, v6, 4, v5")
        a.e(f"v_add_u32 v{20+sp}, 81920, v{16+sp}")
    a.e("v_bfe_u32 v4, v1, 2, 2")
    a.e("v_lshl_add_u32 v5, v3, 3, v4")
    a.e("v_lshlrev_b32 v5, 7, v5")
    a.e("v_lshrrev_b32 v6, 1, v4")
    a.e("v_xor_b32 v6, s38, v6")
    a.e("v_lshl_add_u32 v5, v6, 6, v5")
    a.e("v_bfe_u32 v6, v1, 4, 1")
    a.e("v_lshl_add_u32 v5, v6, 5, v5")
    a.e("v_and_b32 v6, 3, v1")
    a.e("v_lshl_add_u32 v5, v6, 3, v5")
    a.e("v_add_u32 v24, 16384, v5")
    a.e("v_add_u32 v25, 81920, v24")
    ACC={'Q0':96,'Q1':112,'K0':128,'K1':144,'V0':160,'V1':176}
    def fr(p,which):
        base=32+20*p
        return base+{'X0':0,'X1':4,'WQ':8,'WK':12,'WV':16}[which]
    def load(c,s,which):
        p=(c*4+s)&1
        st=c%4
        r=fr(p,which)
        off=(st&1)*40960
        tag=(c,s,which)
        if which[0]=='X':
            av=16+s+(4 if st>=2 else 0)
            o=off+(4096 if which=='X1' else 0)
            a.ds(f"ds_read_b128 {vr(r,4)}, v{av} offset:{o}",tag)
        else:
            av=24+(1 if st>=2 else 0)
            seg={'WQ':0,'WK':1,'WV':2}[which]
            for u in range(2):
                o=off+seg*8192+s*2048+u*512
                a.ds(f"ds_read_b64_tr_b16 {vr(r+2*u,2)}, v{av} offset:{o}",tag)
    def mfma(c,s,t):
        p=(c*4+s)&1
        d=ACC[t]
        x=fr(p,'X'+t[1]); w=fr(p,'W'+t[0])
        cc="0" if (c==0 and s==0) else vr(d,16)
        if t[0]=='V': a.e(f"v_mfma_f32_32x32x16_bf16 {vr(d,16)}, {vr(x,4)}, {vr(w,4)}, {cc}")
        else:         a.e(f"v_mfma_f32_32x32x16_bf16 {vr(d,16)}, {vr(w,4)}, {vr(x,4)}, {cc}")
    a.e("s_barrier")
    for wh in ['WQ','X0','X1','WK','WV']: load(0,0,wh)
    for c in range(8):
        for s in range(4):
            last=(c==7 and s==3)
            nc,ns=(c,s+1) if s<3 else (c+1,0)
            def nl(*ws):
                if not last:
                    for wh in ws: load(nc,ns,wh)
            if s==3 and c<7:
                a.lds_drain()
                mfma(c,s,'Q0')
                a.e("s_barrier")
            else:
                a.need_lds((c,s,'WQ'),(c,s,'X0'))
                mfma(c,s,'Q0')
            nl('WQ','X0')
            a.need_lds((c,s,'X1'))
            mfma(c,s,'Q1')
            nl('X1','WK')
            a.need_lds((c,s,'WK'))
            mfma(c,s,'K0')
            nl('WV')
            mfma(c,s,'K1')
            a.need_lds((c,s,'WV'))
            mfma(c,s,'V0')
            mfma(c,s,'V1')
    a.e("s_lshl_b32 s39, s17, 2")
    a.e("s_lshl_b32 s34, s38, 1")
    a.e("s_add_u32 s39, s39, s34")
    a.e("s_lshl_b32 s40, s16, 2")
    a.e("s_lshl_b32 s34, s37, 1")
    a.e("s_add_u32 s40, s40, s34")
    a.e("s_lshl_b32 s41, s15, 21")
    a.e("s_lshl_b32 s34, s39, 16")
    a.e("s_add_u32 s41, s41, s34")
    a.e("s_lshl_b32 s34, s40, 10")
    a.e("s_add_u32 s41, s41, s34")
    if WS_Q: a.e(f"s_add_u32 s41, s41, {WS_Q}")
    a.e("s_lshl_b32 s42, s15, 22")
    a.e(f"s_add_u32 s42, s42, {WS_KV}")
    a.e("s_lshl_b32 s34, s39, 17")
    a.e("s_add_u32 s42, s42, s34")
    a.e("s_lshl_b32 s34, s40, 11")
    a.e("s_add_u32 s42, s42, s34")
    a.e(f"s_mov_b32 s43, 0x{CSCALE:x}")
    a.e("v_lshlrev_b32 v4, 4, v1")
    a.e("v_and_b32 v5, 0x13, v2")
    a.e("v_bfe_u32 v6, v2, 2, 1")
    a.e("v_lshl_or_b32 v5, v6, 3, v5")
    a.e("v_bfe_u32 v6, v2, 3, 1")
    a.e("v_lshl_or_b32 v5, v6, 2, v5")
    a.e("v_lshl_add_u32 v5, v3, 5, v5")
    a.e("v_lshlrev_b32 v5, 4, v5")
    a.e("v_lshrrev_b32 v6, 4, v2")
    a.e("v_lshlrev_b32 v6, 17, v6")
    a.e("v_lshl_add_u32 v6, v3, 8, v6")
    a.e("v_and_b32 v7, 15, v2")
    a.e("v_lshl_add_u32 v6, v7, 4, v6")
    a.e("v_add_u32 v6, 1024, v6")
    a.e("s_nop 7")
    T=32
    ti=0
    def pack(src,dst,scale):
        for i in range(4):
            if scale:
                a.e(f"v_mul_f32 v{src+2*i}, s43, v{src+2*i}")
                a.e(f"v_mul_f32 v{src+2*i+1}, s43, v{src+2*i+1}")
        for i in range(4):
            a.e(f"v_cvt_pk_bf16_f32 v{dst+i}, v{src+2*i}, v{src+2*i+1}")
    for tt in range(2):
        for hs in range(2):
            d=T+4*(ti%12); ti+=1
            pack(ACC[f'Q{tt}']+8*hs,d,True)
            a.e(f"s_add_u32 s34, s41, {hs*65536+tt*1024}")
            a.e(f"buffer_store_dwordx4 {vr(d,4)}, v4, s[28:31], s34 offen")
    for tt in range(2):
        for hs in range(2):
            d=T+4*(ti%12); ti+=1
            pack(ACC[f'K{tt}']+8*hs,d,False)
            a.e(f"s_add_u32 s34, s42, {hs*131072+tt*2048}")
            a.e(f"buffer_store_dwordx4 {vr(d,4)}, v5, s[28:31], s34 offen")
    for tt in range(2):
        for j in range(2):
            d=T+4*(ti%12); ti+=1
            pack(ACC[f'V{tt}']+8*j,d,False)
            a.e(f"s_add_u32 s34, s42, {tt*2048+j*512}")
            a.e(f"buffer_store_dwordx4 {vr(d,4)}, v6, s[28:31], s34 offen")
    a.lab(f"{name}_end")
    a.e("s_endpgm")
    return a.text()+kd(name,192)
```

```python
from common import *
TS=2064
def gen_k2(name, UNROLL=8):
    a=Asm()
    a.raw(f".globl {name}\n.p2align 8\n.type {name},@function\n{name}:")
    a.e("s_cmp_ge_u32 s2, 256")
    a.e(f"s_cbranch_scc1 {name}_end")
    a.e("s_load_dwordx2 s[12:13], s[0:1], 64")
    a.e("v_lshrrev_b32 v4, 6, v0")
    a.e("v_and_b32 v1, 63, v0")
    a.e("s_and_b32 s18, s2, 7")
    a.e("v_readfirstlane_b32 s14, v4")
    a.e("s_lshr_b32 s19, s2, 3")
    a.e("s_lshl_b32 s15, s18, 2")
    a.e("s_lshr_b32 s16, s19, 3")
    a.e("s_add_u32 s15, s15, s16")
    a.e("s_and_b32 s16, s19, 7")
    a.e("s_lshl_b32 s16, s16, 3")
    a.e("v_and_b32 v2, 31, v1")
    a.e("v_lshrrev_b32 v3, 5, v1")
    a.e("v_lshlrev_b32 v4, 4, v1")
    a.e("s_add_u32 s16, s16, s14")
    a.e("v_lshrrev_b32 v5, 2, v2")
    a.e("v_mov_b32 v6, 0x69")
    a.e("v_lshrrev_b32 v6, v5, v6")
    a.e("v_and_b32 v6, 1, v6")
    a.e("v_cmp_eq_u32 s[40:41], 1, v6")
    a.e("v_lshlrev_b32 v6, 1, v5")
    a.e("v_mov_b32 v7, 0x1c80")
    a.e("v_lshrrev_b32 v6, v6, v7")
    a.e("v_and_b32 v6, 3, v6")
    a.e("v_and_b32 v7, 3, v2")
    a.e("v_lshl_add_u32 v6, v6, 2, v7")
    a.e("v_lshlrev_b32 v6, 4, v6")
    a.e("v_lshl_add_u32 v6, v3, 8, v6")
    a.e("v_add_u32 v5, 1024, v6")
    a.e("s_waitcnt lgkmcnt(0)")
    a.e("s_mov_b32 s28, s12")
    a.e("s_mov_b32 s29, s13")
    a.e(f"s_mov_b32 s30, 0x{WS_SIZE:x}")
    a.e("s_mov_b32 s31, 0x20000")
    QA=80; QB=84; KC=88; KP=92; VP1=96; VC0=100; VC1=104
    a.e("s_lshl_b32 s20, s15, 16")
    a.e("s_lshl_b32 s21, s16, 10")
    a.e("s_add_u32 s20, s20, s21")
    a.e(f"s_add_u32 s21, s20, {WS_Q+0x200000}")
    a.e(f"buffer_load_dwordx4 {vr(QB,4)}, v4, s[28:31], s21 offen")
    a.e("s_lshl_b32 s22, s15, 17")
    a.e("s_lshl_b32 s23, s16, 11")
    a.e("s_add_u32 s23, s22, s23")
    a.e(f"s_add_u32 s24, s23, {WS_KV+0x400000}")
    a.e("s_cmp_eq_u32 s16, 0")
    a.e("s_cselect_b32 s25, 0, 2048")
    a.e("s_sub_u32 s25, s24, s25")
    a.e(f"buffer_load_dwordx4 {vr(KC,4)}, v4, s[28:31], s24 offen")
    a.e(f"buffer_load_dwordx4 {vr(KP,4)}, v4, s[28:31], s25 offen")
    a.e("v_mov_b32 v8, 0x3f803f80")
    for r in range(VP1,VP1+12): a.e(f"v_mov_b32 v{r}, v8")
    a.e("s_mov_b64 s[42:43], exec")
    a.e("s_mov_b64 exec, s[40:41]")
    a.e(f"buffer_load_dwordx4 {vr(VP1,4)}, v5, s[28:31], s25 offen offset:512")
    a.e(f"buffer_load_dwordx4 {vr(VC0,4)}, v5, s[28:31], s24 offen")
    a.e(f"buffer_load_dwordx4 {vr(VC1,4)}, v5, s[28:31], s24 offen offset:512")
    a.e("s_mov_b64 exec, s[42:43]")
    if WS_Q: a.e(f"s_add_u32 s20, s20, {WS_Q}")
    a.e(f"buffer_load_dwordx4 {vr(QA,4)}, v4, s[28:31], s20 offen")
    a.e("s_lshl_b32 s21, s14, 11")
    a.e("s_add_u32 s22, s22, s21")
    a.e(f"s_add_u32 s22, s22, {WS_KV}")
    a.e(f"s_mul_i32 s23, s14, {TS}")
    for c in range(8):
        a.e(f"s_add_u32 m0, s23, {c*8*TS}")
        a.e(f"s_add_u32 s21, s22, {c*8*2048}")
        a.e(f"buffer_load_dwordx4 v4, s[28:31], s21 offen lds")
        a.e(f"buffer_load_dwordx4 v4, s[28:31], s21 offen offset:1024 lds")
    a.e(f"v_mul_u32_u24 v9, {TS}, v1")
    a.e("v_add_u32 v9, 2048, v9")
    a.e("v_mov_b32 v10, v8\nv_mov_b32 v11, v8\nv_mov_b32 v12, v8\nv_mov_b32 v13, v8")
    a.e("s_cmp_lg_u32 s14, 0")
    a.e(f"s_cbranch_scc1 {name}_noones")
    a.e("ds_write_b128 v9, v[10:13]")
    a.lab(f"{name}_noones")
    SC=32; SP=48; O=64
    a.e("v_lshlrev_b32 v9, 3, v3")
    a.e("v_sub_u32 v9, v2, v9")
    a.e("v_mov_b32 v10, 0xff800000")
    a.e("s_cmp_eq_u32 s16, 0")
    a.e("s_cselect_b32 s26, 0x10000, 32")
    for i in range(16):
        Ki=16*(i>>3)+4*((i>>2)&1)+(i&3)
        a.e(f"v_subrev_u32 v11, {Ki}, v9")
        a.e("v_and_b32 v11, 0xfffffff1, v11")
        a.e("v_cmp_eq_u32 vcc, 0, v11")
        a.e("s_nop 1")
        a.e(f"v_cndmask_b32_e64 v{SC+i}, v10, 0, vcc")
    a.e("v_add_u32 v12, s26, v9")
    for i in range(16):
        if i<8:
            a.e(f"v_mov_b32 v{SP+i}, v10"); continue
        Ki=16*(i>>3)+4*((i>>2)&1)+(i&3)
        a.e(f"v_subrev_u32 v11, {Ki}, v12")
        a.e("v_and_b32 v11, 0xfffffff1, v11")
        a.e("v_cmp_eq_u32 vcc, 0, v11")
        a.e("s_nop 1")
        a.e(f"v_cndmask_b32_e64 v{SP+i}, v10, 0, vcc")
    for i in range(16): a.e(f"v_mov_b32 v{O+i}, 0")
    a.e("v_mov_b32 v108, 0xdddddddd")
    a.e("s_waitcnt vmcnt(17)")
    a.e(f"v_mfma_f32_32x32x16_bf16 {vr(SC,16)}, {vr(KC,4)}, {vr(QB,4)}, {vr(SC,16)}")
    a.e(f"v_mfma_f32_32x32x16_bf16 {vr(SP,16)}, {vr(KP,4)}, {vr(QB,4)}, {vr(SP,16)}")
    a.e("s_nop 15\ns_nop 7")
    a.e(f"v_max3_f32 v9, v{SC}, v{SC+1}, v{SC+2}")
    vals=[SC+i for i in range(3,16)]+[SP+i for i in range(8,16)]
    for k in range(0,len(vals)-1,2):
        a.e(f"v_max3_f32 v9, v9, v{vals[k]}, v{vals[k+1]}")
    a.e(f"v_max_f32 v9, v9, v{vals[-1]}")
    a.e("v_mov_b32 v10, v9")
    a.e("s_nop 1")
    a.e("v_permlane32_swap_b32 v9, v10")
    a.e("s_nop 1")
    a.e("v_max_f32 v9, v9, v10")
    for r in [SC+i for i in range(16)]+[SP+i for i in range(8,16)]:
        a.e(f"v_sub_f32 v{r}, v{r}, v9")
    for r in [SC+i for i in range(16)]+[SP+i for i in range(8,16)]:
        a.e(f"v_exp_f32 v{r}, v{r}")
    a.e("s_nop 1")
    a.e(f"v_smfmac_f32_32x32x32_bf16 {vr(O,16)}, {vr(VP1,4)}, {vr(SP+8,8)}, v108")
    a.e(f"v_smfmac_f32_32x32x32_bf16 {vr(O,16)}, {vr(VC0,4)}, {vr(SC,8)}, v108")
    a.e(f"v_smfmac_f32_32x32x32_bf16 {vr(O,16)}, {vr(VC1,4)}, {vr(SC+8,8)}, v108")
    a.e("s_mov_b32 s44, 0\ns_mov_b32 s45, -1")
    a.e("s_nop 15\ns_nop 7")
    def finalize(store_soff_sreg):
        for e in range(4):
            a.e(f"v_cndmask_b32_e64 v{16+e}, v{O+e}, v{O+4+e}, s[44:45]")
            a.e(f"v_cndmask_b32_e64 v{20+e}, v{O+12+e}, v{O+8+e}, s[44:45]")
        a.e(f"v_cndmask_b32_e64 v24, v{O+4}, v{O}, s[44:45]")
    def normstore(soff):
        a.e("v_rcp_f32 v25, v24")
        a.e("s_nop 1")
        for e in range(8): a.e(f"v_mul_f32 v{16+e}, v{16+e}, v25")
        for e in range(4): a.e(f"v_cvt_pk_bf16_f32 v{28+e}, v{16+2*e}, v{17+2*e}")
        a.e(f"buffer_store_dwordx4 v[28:31], v4, s[28:31], {soff} offen")
    finalize(None)
    a.e("s_lshl_b32 s46, s16, 15")
    a.e("s_lshl_b32 s47, s15, 10")
    a.e("s_add_u32 s46, s46, s47")
    a.e(f"s_add_u32 s47, s46, {WS_O+0x200000}")
    a.e(f"s_add_u32 s46, s46, {WS_O}")
    normstore("s47")
    S=[32,48]; KF=[84,88]; V0=[92,96]; V1=[100,104]
    vK,vV0,vV1=110,111,112
    a.e(f"v_mov_b32 v{vK}, v4")
    a.e(f"v_mov_b32 v9, 2048")
    a.e(f"v_cndmask_b32_e64 v{vV0}, v9, v5, s[40:41]")
    a.e(f"v_mov_b32 v9, 1536")
    a.e(f"v_cndmask_b32_e64 v{vV1}, v9, v5, s[40:41]")
    for i in range(16): a.e(f"v_mov_b32 v{O+i}, 0")
    for i in range(16): a.e(f"v_mov_b32 v{S[1]+i}, 0")
    for i in range(4): a.e(f"v_mov_b32 v{V1[1]+i}, 0")
    a.e("s_waitcnt vmcnt(12) lgkmcnt(0)")
    a.e("s_barrier")
    def ldK(t,off): a.ds(f"ds_read_b128 {vr(KF[t&1],4)}, v{vK} offset:{off}",('K',t))
    def ldV0(t,off): a.ds(f"ds_read_b128 {vr(V0[t&1],4)}, v{vV0} offset:{off}",('V0',t))
    def ldV1(t,off): a.ds(f"ds_read_b128 {vr(V1[t&1],4)}, v{vV1} offset:{off+512}",('V1',t))
    def E(buf,lo,hi):
        for i in range(lo,hi): a.e(f"v_exp_f32 v{buf+i}, v{buf+i}")
    def QK(t): a.e(f"v_mfma_f32_32x32x16_bf16 {vr(S[t&1],16)}, {vr(KF[t&1],4)}, {vr(QA,4)}, 0")
    def SM(t,j):
        vv=(V0 if j==0 else V1)[t&1]
        a.e(f"v_smfmac_f32_32x32x32_bf16 {vr(O,16)}, {vr(vv,4)}, {vr(S[t&1]+8*j,8)}, v108")
    ldK(0,0); ldK(1,TS); ldV0(0,0)
    a.need_lds(('K',0))
    QK(0)
    a.e("s_nop 7\ns_nop 7")
    a.e("s_mov_b32 s48, 0")
    a.lab(f"{name}_loop")
    a.lds=[('V1',-1),('K',1),('V0',0)]
    for t in range(UNROLL):
        cur=S[t&1]
        E(cur,0,2)
        a.need_lds(('V1',t-1))
        SM(t-1,1)
        ldV1(t,t*TS)
        E(cur,2,5)
        a.need_lds(('K',t+1))
        QK(t+1)
        ldK(t+2,(t+2)*TS)
        E(cur,5,10)
        a.need_lds(('V0',t))
        SM(t,0)
        ldV0(t+1,(t+1)*TS)
        E(cur,10,16)
    assert [x[0] for x in a.lds]==['V1','K','V0'], a.lds
    a.e(f"v_add_u32 v{vK}, {UNROLL*TS}, v{vK}")
    a.e(f"v_add_u32 v{vV0}, {UNROLL*TS}, v{vV0}")
    a.e(f"v_add_u32 v{vV1}, {UNROLL*TS}, v{vV1}")
    nit=64//UNROLL
    assert UNROLL==8
    a.e("s_cmp_gt_u32 s48, 1")
    a.e(f"s_cbranch_scc1 {name}_nosync")
    a.e("s_cmp_eq_u32 s48, 0")
    a.e(f"s_cbranch_scc1 {name}_sync0")
    a.e("s_waitcnt vmcnt(0)")
    a.e("s_barrier")
    a.e(f"s_branch {name}_nosync")
    a.lab(f"{name}_sync0")
    a.e("s_waitcnt vmcnt(8)")
    a.e("s_barrier")
    a.lab(f"{name}_nosync")
    a.e("s_add_u32 s48, s48, 1")
    a.e(f"s_cmp_lt_u32 s48, {nit}")
    a.e(f"s_cbranch_scc1 {name}_loop")
    a.e("s_waitcnt lgkmcnt(0)")
    a.e("s_nop 1")
    SM(1,1)
    a.lds=[]
    a.e("s_nop 15\ns_nop 7")
    finalize(None)
    a.e("v_mov_b32 v26, 0")
    for e in range(8): a.e(f"v_fmac_f32 v26, 0, v{16+e}")
    a.e("v_add_f32 v26, v26, v24")
    a.e("v_mov_b32 v27, 0x21800000")
    a.e("v_cmp_ge_f32 s[50:51], v26, v27")
    a.e("v_mov_b32 v27, 0x5d800000")
    a.e("v_cmp_le_f32 vcc, v26, v27")
    a.e("s_nop 3")
    a.e("s_and_b64 vcc, vcc, s[50:51]")
    a.e("s_cmp_eq_u64 vcc, exec")
    a.e(f"s_cbranch_scc0 {name}_fallback")
    a.lab(f"{name}_store")
    normstore("s46")
    a.lab(f"{name}_end")
    a.e("s_endpgm")
    a.lab(f"{name}_fallback")
    C=120
    a.e(f"v_subrev_u32 v{vK}, {64*TS}, v{vK}")
    a.e(f"v_subrev_u32 v{vV0}, {64*TS}, v{vV0}")
    a.e(f"v_subrev_u32 v{vV1}, {64*TS}, v{vV1}")
    a.e(f"v_mov_b32 v9, v{vK}")
    a.e("v_mov_b32 v10, 0xff800000")
    a.e("s_mov_b32 s48, 0")
    a.lab(f"{name}_fb1")
    a.e(f"ds_read_b128 {vr(KF[0],4)}, v9")
    a.e(f"v_add_u32 v9, {TS}, v9")
    a.e("s_waitcnt lgkmcnt(0)")
    a.e(f"v_mfma_f32_32x32x16_bf16 {vr(S[0],16)}, {vr(KF[0],4)}, {vr(QA,4)}, 0")
    a.e("s_nop 15\ns_nop 3")
    for k in range(0,16,2): a.e(f"v_max3_f32 v10, v10, v{S[0]+k}, v{S[0]+k+1}")
    a.e("s_add_u32 s48, s48, 1")
    a.e("s_cmp_lt_u32 s48, 64")
    a.e(f"s_cbranch_scc1 {name}_fb1")
    a.e("v_mov_b32 v11, v10")
    a.e("s_nop 1")
    a.e("v_permlane32_swap_b32 v10, v11")
    a.e("s_nop 1")
    a.e("v_max_f32 v10, v10, v11")
    for i in range(16): a.e(f"v_sub_f32 v{C+i}, 0, v10")
    for i in range(16): a.e(f"v_mov_b32 v{O+i}, 0")
    a.e("s_mov_b32 s48, 0")
    a.lab(f"{name}_fb2")
    a.e(f"ds_read_b128 {vr(KF[0],4)}, v{vK}")
    a.e(f"ds_read_b128 {vr(V0[0],4)}, v{vV0}")
    a.e(f"ds_read_b128 {vr(V1[0],4)}, v{vV1} offset:512")
    a.e(f"v_add_u32 v{vK}, {TS}, v{vK}")
    a.e(f"v_add_u32 v{vV0}, {TS}, v{vV0}")
    a.e(f"v_add_u32 v{vV1}, {TS}, v{vV1}")
    a.e("s_waitcnt lgkmcnt(0)")
    a.e(f"v_mfma_f32_32x32x16_bf16 {vr(S[0],16)}, {vr(KF[0],4)}, {vr(QA,4)}, {vr(C,16)}")
    a.e("s_nop 15\ns_nop 3")
    E(S[0],0,16)
    a.e("s_nop 3")
    SM(0,0); SM(0,1)
    a.e("s_nop 15\ns_nop 3")
    a.e("s_add_u32 s48, s48, 1")
    a.e("s_cmp_lt_u32 s48, 64")
    a.e(f"s_cbranch_scc1 {name}_fb2")
    a.e("s_nop 15\ns_nop 7")
    finalize(None)
    a.e(f"s_branch {name}_store")
    return a.text()+kd(name,136)
```

```python
from common import *
def gen_k3(name):
    a=Asm()
    a.raw(f".globl {name}\n.p2align 8\n.type {name},@function\n{name}:")
    a.e("s_cmp_ge_u32 s2, 256")
    a.e(f"s_cbranch_scc1 {name}_end")
    a.e("s_load_dwordx2 s[4:5], s[0:1], 16")
    a.e("s_load_dwordx2 s[6:7], s[0:1], 40")
    a.e("s_load_dwordx2 s[8:9], s[0:1], 48")
    a.e("s_load_dwordx2 s[12:13], s[0:1], 64")
    a.e("v_lshrrev_b32 v4, 6, v0")
    a.e("v_and_b32 v1, 63, v0")
    a.e("s_and_b32 s18, s2, 7")
    a.e("v_readfirstlane_b32 s14, v4")
    a.e("s_lshr_b32 s19, s2, 3")
    a.e("s_lshr_b32 s15, s18, 2")
    a.e("s_and_b32 s16, s18, 3")
    a.e("s_lshl_b32 s16, s16, 2")
    a.e("s_and_b32 s17, s19, 3")
    a.e("s_add_u32 s16, s16, s17")
    a.e("s_lshr_b32 s17, s19, 2")
    a.e("s_waitcnt lgkmcnt(0)")
    a.e("s_cmp_eq_u32 s15, 0")
    a.e("s_cselect_b32 s20, s4, s6")
    a.e("s_cselect_b32 s21, s5, s7")
    a.e("s_mov_b32 s22, 0x80000")
    a.e("s_mov_b32 s23, 0x20000")
    a.e("s_mov_b32 s24, s8")
    a.e("s_mov_b32 s25, s9")
    a.e("s_mov_b32 s26, 0x400000")
    a.e("s_mov_b32 s27, 0x20000")
    a.e("s_mov_b32 s28, s12")
    a.e("s_mov_b32 s29, s13")
    a.e(f"s_mov_b32 s30, 0x{WS_SIZE:x}")
    a.e("s_mov_b32 s31, 0x20000")
    a.e("s_cmp_lt_u32 s14, 4")
    a.e(f"s_cbranch_scc1 {name}_compute")
    a.e("s_sub_u32 s14, s14, 4")
    a.e("v_lshrrev_b32 v3, 3, v1")
    a.e("v_and_b32 v4, 7, v1")
    a.e("v_bfe_u32 v5, v1, 4, 1")
    a.e("v_lshlrev_b32 v5, 2, v5")
    a.e("v_xor_b32 v6, v4, v5")
    a.e("v_lshlrev_b32 v8, 10, v3")
    a.e("v_lshl_add_u32 v12, v6, 4, v8")
    a.e("s_lshl_b32 s32, s17, 7")
    a.e("s_lshl_b32 s34, s14, 15")
    a.e("s_add_u32 s32, s32, s34")
    a.e("s_lshl_b32 s33, s14, 12")
    for c in range(4):
        for t in range(4):
            a.e(f"s_add_u32 m0, s33, {c*16384+t*1024}")
            a.e(f"s_add_u32 s34, s32, {c*131072+t*8192}")
            a.e(f"buffer_load_dwordx4 v12, s[20:23], s34 offen lds")
    for c in range(4):
        a.e(f"s_waitcnt vmcnt({12-4*c})")
        a.e("s_barrier")
    a.e("s_endpgm")
    a.lab(f"{name}_compute")
    a.e("v_and_b32 v2, 31, v1")
    a.e("v_lshrrev_b32 v3, 5, v1")
    a.e("v_lshlrev_b32 v4, 4, v1")
    a.e("s_lshl_b32 s37, s16, 2")
    a.e("s_add_u32 s37, s37, s14")
    a.e("s_lshl_b32 s38, s37, 15")
    a.e("s_lshl_b32 s34, s15, 21")
    a.e("s_add_u32 s38, s38, s34")
    a.e(f"s_add_u32 s38, s38, {WS_O}")
    OF=64
    for k in range(32):
        if k%4==0 and k>0: a.e("s_add_u32 s38, s38, 4096")
        a.vmi(f"buffer_load_dwordx4 {vr(OF+4*k,4)}, v4, s[28:31], s38 offen offset:{(k%4)*1024}",('o',k))
    a.e("v_bfe_u32 v5, v1, 2, 2")
    a.e("v_lshl_add_u32 v6, v3, 3, v5")
    a.e("v_lshlrev_b32 v6, 7, v6")
    a.e("v_bfe_u32 v7, v1, 4, 1")
    a.e("v_lshl_add_u32 v6, v7, 5, v6")
    a.e("v_and_b32 v7, 3, v1")
    a.e("v_lshl_add_u32 v6, v7, 3, v6")
    a.e("v_lshrrev_b32 v7, 1, v5")
    a.e("v_lshl_add_u32 v16, v7, 6, v6")
    a.e("v_xor_b32 v7, 1, v7")
    a.e("v_lshl_add_u32 v17, v7, 6, v6")
    ACC=[192,208]
    def fr(p,ft): return 24+8*p+4*ft
    def load(k):
        p=k&1
        for ft in range(2):
            for u in range(2):
                a.ds(f"ds_read_b64_tr_b16 {vr(fr(p,ft)+2*u,2)}, v{16+ft} offset:{k*2048+u*512}",(k,ft))
    a.e("s_barrier")
    load(0)
    for k in range(32):
        if k%8==7 and k<31:
            a.lds_drain()
            a.e("s_barrier")
        cur=[(k,0),(k,1)]
        if k<31: load(k+1)
        a.need_vm(('o',k))
        for ft in range(2):
            a.need_lds((k,ft))
            cc="0" if k==0 else vr(ACC[ft],16)
            a.e(f"v_mfma_f32_32x32x16_bf16 {vr(ACC[ft],16)}, {vr(fr(k&1,ft),4)}, {vr(OF+4*k,4)}, {cc}")
    a.e("s_lshl_b32 s39, s37, 16")
    a.e("s_lshl_b32 s34, s15, 10")
    a.e("s_add_u32 s39, s39, s34")
    a.e("s_lshl_b32 s34, s17, 7")
    a.e("s_add_u32 s39, s39, s34")
    a.e("v_lshlrev_b32 v5, 11, v2")
    a.e("v_lshl_add_u32 v5, v3, 4, v5")
    a.e("s_nop 15")
    for ft in range(2):
        for i in range(8):
            a.e(f"v_cvt_pk_bf16_f32 v{32+8*ft+i}, v{ACC[ft]+2*i}, v{ACC[ft]+2*i+1}")
    a.e("s_nop 1")
    for ft in range(2):
        for q in range(2):
            b=32+8*ft+4*q
            a.e(f"v_permlane32_swap_b32 v{b}, v{b+2}")
            a.e(f"v_permlane32_swap_b32 v{b+1}, v{b+3}")
    for ft in range(2):
        for q in range(2):
            b=32+8*ft+4*q
            a.e(f"buffer_store_dwordx4 {vr(b,4)}, v5, s[24:27], s39 offen offset:{ft*64+q*32}")
    a.lab(f"{name}_end")
    a.e("s_endpgm")
    return a.text()+kd(name,224)
```

```python
import sys
sys.path.insert(0,'gen')
from k1 import gen_k1
from k2 import gen_k2
from k3 import gen_k3
HDR=open('concat_heads__mha_block__sliding_local_dilated__prompt.s.ref').read().split("; Override launch")[0]
def build(extra_empty=0):
    s=HDR
    s+="; @launch kernel=qkv_kernel grid=(256,1,1) block=(512,1,1) lds=163840\n"
    s+="; @launch kernel=attn_kernel grid=(256,1,1) block=(512,1,1) lds=137216\n"
    s+="; @launch kernel=oproj_kernel grid=(256,1,1) block=(512,1,1) lds=65536\n"
    for i in range(extra_empty):
        s+="; @launch kernel=empty_kernel grid=(256,1,1) block=(512,1,1) lds=0\n"
    s+='.amdgcn_target "amdgcn-amd-amdhsa--gfx950"\n.text\n'
    s+=gen_k1("qkv_kernel")+gen_k2("attn_kernel")+gen_k3("oproj_kernel")
    if extra_empty:
        from common import kd
        s+=".globl empty_kernel\n.p2align 8\n.type empty_kernel,@function\nempty_kernel:\n    s_endpgm\n"+kd("empty_kernel",8,16)
    return s
if __name__=="__main__":
    out=sys.argv[1] if len(sys.argv)>1 else 'concat_heads__mha_block__sliding_local_dilated__prompt.s'
    ne=int(sys.argv[2]) if len(sys.argv)>2 else 0
    open(out,'w').write(build(ne))
```
